```python
import torch

def _softmax(x, axis=-1):
    return torch.softmax(x, dim=axis)
def _gelu(x):
    return torch.nn.functional.gelu(x, approximate="tanh")
def _silu(x):
    return torch.nn.functional.silu(x)
def _sigmoid(x):
    return torch.sigmoid(x)
def _layernorm(x, axis=-1, eps=1e-5):
    m = x.mean(dim=axis, keepdim=True)
    v = x.var(dim=axis, keepdim=True, unbiased=False)
    return (x - m) / torch.sqrt(v + eps)
def _scatter_add(tgt, idx, src, axis=0):
    return tgt.clone().index_add_(axis, idx, src)
def _segment_sum(src, seg, n):
    out = torch.zeros((n,) + src.shape[1:], dtype=src.dtype)
    return out.index_add_(0, seg, src)
def _pad(x, pw):
    flat = tuple(v for pair in reversed(pw) for v in pair)
    return torch.nn.functional.pad(x, flat)

kernel_name = 'gated_mix__gqa_block_cached__glu_gated_reglu__decode'

def setup_inputs():

    _w = (lambda a: (lambda t: t.to(torch.bfloat16) if t.is_floating_point() else t)(torch.as_tensor(a)))
    def _A_setup():
        B, Sq, D = 1, 1, 448
        Hq, Hkv, Sk, Dh = 16, 8, 65536, 256
        assert Hq % Hkv == 0, (Hq, Hkv)
        return {
            "x": _w((lambda *s: torch.randn(*s, dtype=torch.bfloat16) * 0.05)(B, Sq, D)),
            "k_cache": _w((lambda *s: torch.randn(*s, dtype=torch.bfloat16) * 6.4)(B, Hkv, Sk, Dh)),
            "v_cache": _w((lambda *s: torch.randn(*s, dtype=torch.bfloat16) * 0.05)(B, Hkv, Sk, Dh)),
            "wq": _w((lambda *s: torch.randn(*s, dtype=torch.bfloat16) * 6.4)(D, Hq * Dh) * (D ** -0.5)),
            "wo": _w((lambda *s: torch.randn(*s, dtype=torch.bfloat16) * 0.05)(Hq * Dh, D) * ((Hq * Dh) ** -0.5)),
        }
    _A_in = _A_setup()

    def _B_setup():
        B, S, D, F = 1, 1, 448, 1792
        return {
            "x": _w((lambda *s: torch.randn(*s, dtype=torch.bfloat16) * 0.05)(B, S, D)),
            "W_gate": _w((lambda *s: torch.randn(*s, dtype=torch.bfloat16) * 0.4)(D, F) * (2.0 / D) ** 0.5),
            "W_up": _w((lambda *s: torch.randn(*s, dtype=torch.bfloat16) * 0.4)(D, F) * (2.0 / D) ** 0.5),
            "W_down": _w((lambda *s: torch.randn(*s, dtype=torch.bfloat16) * 0.4)(F, D) * (1.0 / F) ** 0.5),
        }
    _B_in = _B_setup()

    return {
        "A_x": _A_in["x"],
        "A_k_cache": _A_in["k_cache"],
        "A_v_cache": _A_in["v_cache"],
        "A_wq": _A_in["wq"],
        "A_wo": _A_in["wo"],
        "B_x": _B_in["x"],
        "B_W_gate": _B_in["W_gate"],
        "B_W_up": _B_in["W_up"],
        "B_W_down": _B_in["W_down"],
        "gate_w": _w((lambda *s: torch.randn(*s, dtype=torch.bfloat16) * 0.05)(448) * 16.0),
    }

def reference(A_x, A_k_cache, A_v_cache, A_wq, A_wo, B_x, B_W_gate, B_W_up, B_W_down, gate_w):
    def _A_ref(x, k_cache, v_cache, wq, wo):
        B, Sq, D = x.shape
        Hq, Dh = 16, 256
        Hkv = k_cache.shape[1]
        rep = Hq // Hkv
        q = (lambda x, *d: x.permute(*d))((x @ wq).reshape(B, Sq, Hq, Dh), 0, 2, 1, 3)
        k = (lambda x, n, axis: torch.repeat_interleave(x, n, dim=axis))(k_cache, rep, axis=1)
        v = (lambda x, n, axis: torch.repeat_interleave(x, n, dim=axis))(v_cache, rep, axis=1)
        scores = torch.einsum("bhqd,bhkd->bhqk", q, k) * (Dh ** -0.5)
        p = _softmax(scores, axis=-1)
        o = torch.einsum("bhqk,bhkd->bhqd", p, v)
        return (lambda x, *d: x.permute(*d))(o, 0, 2, 1, 3).reshape(B, Sq, Hq * Dh) @ wo

    def _B_ref(x, W_gate, W_up, W_down):
        gate = torch.einsum("bsd,df->bsf", x, W_gate)
        up = torch.einsum("bsd,df->bsf", x, W_up)
        gate = gate * (lambda x, dt: x.to(dt))(gate > 0, gate.dtype)
        h = gate * up
        return torch.einsum("bsf,fd->bsd", h, W_down)

    x = A_x
    g = _sigmoid((x * gate_w).sum(-1, keepdims=True))
    a = _A_ref(x, A_k_cache, A_v_cache, A_wq, A_wo)
    b = _B_ref(x, B_W_gate, B_W_up, B_W_down)
    return g * a + (1 - g) * b
```

```python
import sys, math

KNAME = "gated_mix__gqa_block_cached__glu_gated_reglu__decode_kernel"

class Cfg:
    NS = 10
    NSH = 2
    KVFLAGS = "nt"
    WFLAGS = "nt"
    STAMPS = False
    SPIN_MAX = 1 << 18
    INIT_INFLIGHT = 8
    DYN = True

WS_E    = 0x0
WS_CNT  = 0x1000
WS_Q    = 0x4000
WS_OP   = 0x10000
OP_STRIDE = 4096
WS_PO   = 0x110000
PO_STRIDE = 1792
WS_STAMP = 0x200000
WS_SIZE = 0x400000
TAG_C_LO = 0x9E3779B1
TAG_C_HI = 0x7F4A7C15

def lds_layout(NS):
    L = {}
    L['Q'] = 0
    L['H'] = 1024
    L['ML'] = 1024 + 128
    L['BA'] = 2048
    L['BB'] = 4096
    L['AP'] = 6144
    L['P'] = 8192
    L['SIZE'] = 8192 + NS * 2048
    return L

def gen(cfg):
    NS, NSH = cfg.NS, cfg.NSH
    NWAVES = NS + 2
    WPS = 32 // NSH
    KEYS_PER_SHARD = 65536 // NSH
    NT = KEYS_PER_SHARD // 16
    NSTATIC = WPS * NS
    L = lds_layout(NS)
    o = []
    def A(s):
        for line in s.strip("\n").split("\n"):
            o.append(line.strip() if not line.strip().endswith(":") else line.strip())
    C_SCALE = math.log2(math.e) / 16.0
    import struct
    def f2u(x): return struct.unpack("<I", struct.pack("<f", x))[0]
    CS = "0x%08x" % f2u(C_SCALE)
    LOG2E = "0x%08x" % f2u(math.log2(math.e))

    hdr = open("gated_mix__gqa_block_cached__glu_gated_reglu__decode.s.ref").read().split("\n")
    for line in hdr:
        if line.startswith("; @launch"):
            o.append(f"; @launch grid=(256,1,1) block=({64*NWAVES},1,1) lds={L['SIZE']}")
        elif line.startswith(";"):
            o.append(line)
        else:
            break
    A('.amdgcn_target "amdgcn-amd-amdhsa--gfx950"')
    A(".text")
    A(f".globl {KNAME}")
    A(".p2align 8")
    A(f".type {KNAME},@function")
    A(f"{KNAME}:")

    sG, sC, sX, sSH = "s4", "s5", "s6", "s7"
    A(f"""
    s_cmp_ge_u32 s2, 256
    s_cbranch_scc1 L_done
    s_load_dwordx16 s[16:31], s[0:1], 0
    s_load_dwordx8 s[32:39], s[0:1], 64
    s_load_dwordx2 s[40:41], s[0:1], 96
    """)
    if cfg.STAMPS: A("s_memrealtime s[90:91]")
    A(f"""
    v_lshrrev_b32 v2, 6, v0
    v_and_b32 v1, 63, v0
    s_lshr_b32 {sG}, s2, 5
    v_readfirstlane_b32 s3, v2
    s_and_b32 {sC}, s2, 31
    s_and_b32 {sX}, s2, 7
    s_lshr_b32 {sSH}, {sC}, {int(math.log2(WPS))}
    v_lshrrev_b32 v2, 4, v1
    v_and_b32 v3, 15, v1
    v_lshrrev_b32 v8, 2, v3          ; j0>>1
    v_bfe_u32 v9, v3, 1, 1           ; j0&1
    v_mov_b32 v10, 0xffff
    v_lshlrev_b32 v9, 4, v9          ; 0 or 16
    v_lshlrev_b32 v10, v9, v10       ; 0xffff << (0|16)
    v_cmp_eq_u32 vcc, 0, v8
    s_cmp_lt_u32 s3, 2
    v_cndmask_b32 v4, 0, v10, vcc
    v_cmp_eq_u32 vcc, 1, v8
    s_nop 1
    v_cndmask_b32 v5, 0, v10, vcc
    v_cmp_eq_u32 vcc, 2, v8
    s_nop 1
    v_cndmask_b32 v6, 0, v10, vcc
    v_cmp_eq_u32 vcc, 3, v8
    s_nop 1
    v_cndmask_b32 v7, 0, v10, vcc
    s_cbranch_scc1 L_service
    """)
    o_idx = [i for i,l in enumerate(o) if l == "s_cmp_lt_u32 s3, 2"][0]
    o.insert(o_idx, "s_nop 0")

    RQ, RK, RV = 36, 68, 100
    vOK, vOV, vM, vMC, vL = "v11", "v12", "v8", "v9", "v10"
    S = 16
    ACC = 28
    A0, A1 = 20, 24
    sW = "s8"
    sOFF, sBASE, sTK, sTILE, sVAL, sCS = "s60", "s61", "s62", "s63", "s64", "s65"
    A(f"""
    s_sub_u32 {sW}, s3, 2
    v_lshlrev_b32 {vOK}, 9, v3
    v_lshl_add_u32 {vOK}, v2, 4, {vOK}
    v_lshlrev_b32 {vOV}, 11, v2
    v_lshl_add_u32 {vOV}, v3, 4, {vOV}
    s_lshl_b32 s42, {sG}, 25
    s_mul_i32 {sBASE}, {sSH}, {KEYS_PER_SHARD*512}
    s_and_b32 s43, {sC}, {WPS-1}
    s_mul_i32 {sTILE}, s43, {NS}
    s_add_u32 {sTILE}, {sTILE}, {sW}
    s_lshl_b32 {sOFF}, {sTILE}, 13
    s_add_u32 {sOFF}, {sOFF}, {sBASE}
    s_mul_i32 s43, {sG}, {NSH}
    s_add_u32 s43, s43, {sSH}
    s_lshl_b32 s43, s43, 8
    s_add_u32 s43, s43, {WS_CNT}
    s_mov_b32 {sCS}, {CS}
    s_waitcnt lgkmcnt(0)
    s_add_u32 s44, s18, s42
    s_addc_u32 s45, s19, 0
    s_mov_b32 s46, 0x2000000
    s_mov_b32 s47, 0x20000
    s_add_u32 s48, s20, s42
    s_addc_u32 s49, s21, 0
    s_mov_b32 s50, 0x2000000
    s_mov_b32 s51, 0x20000
    s_add_u32 s52, s40, s43
    s_addc_u32 s53, s41, 0
    """)
    def kload(s): return f"buffer_load_dwordx4 v[{RK+4*s}:{RK+4*s+3}], {vOK}, s[44:47], {sOFF} offen offset:{64*s} {cfg.KVFLAGS}"
    def vload(i):
        t, h = i // 2, i % 2
        return f"buffer_load_dwordx4 v[{RV+4*i}:{RV+4*i+3}], {vOV}, s[48:51], {sOFF} offen offset:{t*512+h*256} {cfg.KVFLAGS}"
    for s in range(8): A(kload(s))
    for i in range(8):
        if cfg.INIT_INFLIGHT < 16:
            n_issued = 8 + i
            if n_issued - cfg.INIT_INFLIGHT >= 0:
                A(f"s_waitcnt vmcnt({cfg.INIT_INFLIGHT-1})")
        A(vload(i))
    A(f"""
    v_mov_b32 {vM}, 0xff7fffff
    v_mov_b32 {vMC}, 0
    v_mov_b32 {vL}, 0
    """)
    for i in range(8): A(f"v_mov_b32 v{ACC+i}, 0")
    A(f"""
    v_and_b32 v13, 1, v1
    v_lshlrev_b32 v13, 9, v13
    v_lshl_add_u32 v13, v2, 4, v13
    s_barrier
    """)
    for s in range(8): A(f"ds_read_b128 v[{RQ+4*s}:{RQ+4*s+3}], v13 offset:{L['Q']+64*s}")
    A("s_waitcnt lgkmcnt(0)")
    if cfg.STAMPS: A("s_memrealtime s[92:93]")
    A("L_loop:")
    if cfg.DYN:
        A(f"""
        s_mov_b32 {sTK}, 1
        s_atomic_add {sTK}, s[52:53], 0 glc
        """)
    A("s_waitcnt vmcnt(8)")
    for s in range(8):
        c = "0" if s == 0 else f"v[{S}:{S+3}]"
        A(f"v_mfma_f32_16x16x32_bf16 v[{S}:{S+3}], v[{RK+4*s}:{RK+4*s+3}], v[{RQ+4*s}:{RQ+4*s+3}], {c}")
    if cfg.DYN:
        A(f"""
        s_waitcnt lgkmcnt(0)
        s_add_u32 {sTILE}, {sTK}, {NSTATIC}
        """)
    else:
        A(f"s_add_u32 {sTILE}, {sTILE}, {NSTATIC}")
    A(f"""
    s_cmp_lt_u32 {sTILE}, {NT}
    s_cselect_b32 s46, 0x2000000, 0
    s_cselect_b32 s50, 0x2000000, 0
    s_cselect_b32 {sVAL}, 1, 0
    s_cselect_b32 {sTILE}, {sTILE}, 0
    s_lshl_b32 {sOFF}, {sTILE}, 13
    s_add_u32 {sOFF}, {sOFF}, {sBASE}
    """)
    if not cfg.DYN:
        pass
    for s in range(8): A(kload(s))
    A(f"""
    v_max3_f32 v14, v{S}, v{S+1}, v{S+2}
    v_max_f32 v14, v14, v{S+3}
    v_cmp_gt_f32 vcc, v14, {vM}
    s_cbranch_vccnz L_update
    L_upd_ret:
    """)
    for i in range(4): A(f"v_fma_f32 v{S+i}, v{S+i}, {sCS}, -{vMC}")
    for i in range(4): A(f"v_exp_f32 v{S+i}, v{S+i}")
    A(f"""
    v_cvt_pk_bf16_f32 v14, v{S}, v{S}
    v_add_f32 v15, v{S}, v{S+1}
    v_add_f32 v13, v{S+2}, v{S+3}
    """)
    for r in range(4): A(f"v_and_b32 v{A0+r}, v14, v{4+r}")
    A(f"""
    v_cvt_pk_bf16_f32 v14, v{S+1}, v{S+1}
    v_add_f32 {vL}, {vL}, v15
    s_waitcnt vmcnt(8)
    """)
    def pv(t, a):
        A(f"v_mfma_f32_16x16x32_bf16 v[{ACC}:{ACC+3}], v[{a}:{a+3}], v[{RV+8*t}:{RV+8*t+3}], v[{ACC}:{ACC+3}]")
        A(f"v_mfma_f32_16x16x32_bf16 v[{ACC+4}:{ACC+7}], v[{a}:{a+3}], v[{RV+8*t+4}:{RV+8*t+7}], v[{ACC+4}:{ACC+7}]")
    for r in range(4): A(f"v_and_b32 v{A1+r}, v14, v{4+r}")
    A(f"v_cvt_pk_bf16_f32 v14, v{S+2}, v{S+2}")
    A(f"v_add_f32 {vL}, {vL}, v13")
    pv(0, A0)
    for r in range(4): A(f"v_and_b32 v{A0+r}, v14, v{4+r}")
    A(f"v_cvt_pk_bf16_f32 v14, v{S+3}, v{S+3}")
    pv(1, A1)
    for r in range(4): A(f"v_and_b32 v{A1+r}, v14, v{4+r}")
    pv(2, A0)
    A("s_nop 0")
    pv(3, A1)
    for i in range(8): A(vload(i))
    A(f"""
    s_cmp_lg_u32 {sVAL}, 0
    s_cbranch_scc1 L_loop
    s_branch L_stream_end
    """)
    A(f"""
    L_update:
    v_max_f32 v14, v14, {vM}
    v_mov_b32 v15, v14
    s_nop 1
    v_permlane16_swap_b32 v15, v14
    s_nop 1
    v_max_f32 v14, v14, v15
    v_mov_b32 v15, v14
    s_nop 1
    v_permlane32_swap_b32 v15, v14
    s_nop 1
    v_max_f32 v14, v14, v15
    v_sub_f32 v15, {vM}, v14
    v_mul_f32 v15, {sCS}, v15
    v_exp_f32 v15, v15
    v_mov_b32 {vM}, v14
    v_mul_f32 {vMC}, {sCS}, v14
    v_mul_f32 {vL}, {vL}, v15
    s_nop 1
    """)
    for i in range(8):
        h = i & 1
        A(f"v_mul_f32_dpp v{ACC+i}, v15, v{ACC+i} quad_perm:[{h},{h},{h},{h}] row_mask:0xf bank_mask:0xf")
    A("s_branch L_upd_ret")

    A(f"""
    L_stream_end:
    """)
    if cfg.STAMPS: A("s_memrealtime s[94:95]")
    A(f"""
    v_mov_b32 v15, {vL}
    s_nop 1
    v_permlane16_swap_b32 v15, {vL}
    s_nop 1
    v_add_f32 {vL}, {vL}, v15
    v_mov_b32 v15, {vL}
    s_nop 1
    v_permlane32_swap_b32 v15, {vL}
    s_nop 1
    v_add_f32 v15, {vL}, v15
    v_mov_b32 v14, {vMC}            ; v14 = mc
    s_lshl_b32 s42, {sW}, 4
    s_add_u32 s42, s42, {L['ML']}
    v_and_b32 v13, 1, v1
    v_lshlrev_b32 v13, 3, v13
    v_add_u32 v13, s42, v13
    s_mov_b64 s[56:57], exec
    s_mov_b64 exec, 3
    ds_write_b64 v13, v[14:15]
    s_mov_b64 exec, s[56:57]
    s_lshl_b32 s42, {sW}, 11
    s_add_u32 s42, s42, {L['P']}
    v_lshlrev_b32 v13, 5, v3
    v_lshl_add_u32 v13, v2, 3, v13
    v_add_u32 v13, s42, v13
    s_nop 4
    """)
    for half in range(2):
        for i in range(4):
            h = i & 1
            A(f"ds_write_b32 v13, v{ACC+4*half+i} offset:{h*1024+half*512+(i>>1)*4}")
    A("s_waitcnt lgkmcnt(0)")
    if cfg.STAMPS:
        A(f"""
        s_waitcnt lgkmcnt(0)
        s_mul_i32 s42, s2, 16
        s_add_u32 s42, s42, s3
        s_lshl_b32 s42, s42, 5
        s_add_u32 s42, s42, {WS_STAMP}
        v_mov_b32 v20, s90
        v_mov_b32 v21, s92
        v_mov_b32 v22, s94
        v_mov_b32 v23, 0
        v_mov_b32 v13, s42
        s_mov_b64 exec, 1
        global_store_dwordx4 v13, v[20:23], s[40:41]
        s_mov_b64 exec, -1
        """)
    A("""
    s_barrier
    s_endpgm
    """)

    sH = "s3"
    sT0, sT1 = "s66", "s67"
    sF, sFFN = "s68", "s69"
    X = 16
    W = 24
    W2 = 52
    AC = 80
    AC2 = 88
    T = 8
    def spin_guard(label, cnt):
        return f"s_add_u32 {cnt}, {cnt}, 1\ns_cmp_lt_u32 {cnt}, {cfg.SPIN_MAX}\ns_cbranch_scc1 {label}"
    A(f"""
    L_service:
    s_setprio 3
    v_lshlrev_b32 v8, 1, v1            ; lane*2
    v_lshlrev_b32 v9, 13, v1
    v_lshlrev_b32 v10, 4, v1           ; lane*16
    s_lshr_b32 s42, {sC}, 3
    s_lshl_b32 s43, {sX}, 2
    s_add_u32 s9, s42, s43             ; s9 = sl
    s_lshl_b32 s10, {sG}, 10
    s_lshl_b32 s42, s9, 5
    s_add_u32 s10, s10, s42
    s_lshl_b32 s42, {sH}, 4
    s_add_u32 s10, s10, s42
    v_mov_b32 v12, 0
    s_waitcnt lgkmcnt(0)
    s_mov_b32 s48, s40
    s_mov_b32 s49, s41
    s_mov_b32 s50, {WS_SIZE}
    s_mov_b32 s51, 0x20000
    s_mov_b32 s44, s22
    s_mov_b32 s45, s23
    s_mov_b32 s46, {448*8192}
    s_mov_b32 s47, 0x20000
    ; x SRD
    s_mov_b32 s56, s16
    s_mov_b32 s57, s17
    s_mov_b32 s58, 896
    s_mov_b32 s59, 0x20000
    """)
    A(f"""
    v_mov_b32 v{AC}, -1
    v_mov_b32 v{AC+1}, -1
    v_mov_b32 v{AC+2}, -1
    v_mov_b32 v{AC+3}, -1
    s_cmp_eq_u32 {sH}, 0
    s_cbranch_scc0 L_rst_b
    s_mul_i32 s11, s2, {OP_STRIDE}
    s_add_u32 s11, s11, {WS_OP}
    buffer_store_dwordx4 v[{AC}:{AC+3}], v10, s[48:51], s11 offen sc1
    buffer_store_dwordx4 v[{AC}:{AC+3}], v10, s[48:51], s11 offen offset:1024 sc1
    s_mov_b64 exec, 1
    buffer_store_dwordx4 v[{AC}:{AC+3}], v10, s[48:51], s11 offen offset:2048 sc1
    s_and_b32 s42, {sC}, {WPS-1}
    s_cmp_eq_u32 s42, 0
    s_cbranch_scc0 L_rst_a2
    s_mul_i32 s42, {sG}, {NSH}
    s_add_u32 s42, s42, {sSH}
    s_lshl_b32 s42, s42, 8
    s_add_u32 s42, s42, {WS_CNT}
    v_mov_b32 v13, 0
    buffer_atomic_swap v13, v12, s[48:51], s42 offen
    L_rst_a2:
    s_mov_b64 exec, -1
    s_branch L_rst_done
    L_rst_b:
    s_mul_i32 s11, s2, {PO_STRIDE}
    s_add_u32 s11, s11, {WS_PO}
    buffer_store_dwordx4 v[{AC}:{AC+3}], v10, s[48:51], s11 offen sc1
    s_mov_b32 exec_lo, -1
    s_mov_b32 exec_hi, 0xffff
    buffer_store_dwordx4 v[{AC}:{AC+3}], v10, s[48:51], s11 offen offset:1024 sc1
    s_mov_b64 exec, -1
    L_rst_done:
    """)
    for i in range(7):
        A(f"s_add_u32 s11, s10, {i*64*8192}")
        A(f"buffer_load_dwordx4 v[{W+4*i}:{W+4*i+3}], v9, s[44:47], s11 offen {cfg.WFLAGS}")
    for i in range(7):
        A(f"buffer_load_ushort v{X+i}, v8, s[56:59], 0 offen offset:{128*i}")
    A(f"buffer_load_dwordx2 v[14:15], v12, s[48:51], 0 offen offset:{WS_E} sc1")
    A("s_waitcnt vmcnt(0)")

    def gemv_slice(Wb, ACb):
        for j in range(8): A(f"v_mov_b32 v{ACb+j}, 0")
        for i in range(7):
            xr = X + i
            pair = xr & ~1
            sel = "op_sel_hi:[1,0,1]" if xr % 2 == 0 else "op_sel:[0,1,0] op_sel_hi:[1,1,1]"
            for d in range(4):
                t = 8 + 2*(d & 1) + (0)
                t = 8 if d % 2 == 0 else 10
                A(f"v_lshlrev_b32 v{t}, 16, v{Wb+4*i+d}")
                A(f"v_and_b32 v{t+1}, 0xffff0000, v{Wb+4*i+d}")
                A(f"v_pk_fma_f32 v[{ACb+2*d}:{ACb+2*d+1}], v[{t}:{t+1}], v[{pair}:{pair+1}], v[{ACb+2*d}:{ACb+2*d+1}] {sel}")
        A("s_nop 1")
        for j in range(4): A(f"v_permlane32_swap_b32 v{ACb+j}, v{ACb+4+j}")
        A("s_nop 1")
        for j in range(4): A(f"v_add_f32 v{ACb+j}, v{ACb+j}, v{ACb+4+j}")
        for mode in ["quad_perm:[1,0,3,2]", "quad_perm:[2,3,0,1]", "row_half_mirror", "row_mirror"]:
            for j in range(4): A(f"v_add_f32_dpp v{ACb+j}, v{ACb+j}, v{ACb+j} {mode} row_mask:0xf bank_mask:0xf")
        A("s_nop 0")
        for j in range(4): A(f"v_add_f32_dpp v{ACb+j}, v{ACb+j}, v{ACb+j} row_bcast:15 row_mask:0xa bank_mask:0xf")
    A("v_mov_b32 v96, v10\nv_mov_b32 v97, v8")
    for i in range(7): A(f"v_lshlrev_b32 v{X+i}, 16, v{X+i}")
    A(f"v_mov_b32 v{X+7}, 0")
    A(f"""
    v_readfirstlane_b32 {sT0}, v14
    v_readfirstlane_b32 {sT1}, v15
    """)
    gemv_slice(W, AC)
    A(f"""
    s_add_u32 {sT0}, {sT0}, {TAG_C_LO}
    s_addc_u32 {sT1}, {sT1}, {TAG_C_HI}
    v_cvt_pk_bf16_f32 v12, v{AC}, v{AC+1}
    v_cvt_pk_bf16_f32 v13, v{AC+2}, v{AC+3}
    v_mov_b32 v14, {sT0}
    v_mov_b32 v15, {sT1}
    s_lshl_b32 s42, s9, 2
    s_lshl_b32 s43, {sH}, 1
    s_add_u32 s42, s42, s43
    s_lshl_b32 s42, s42, 4
    s_lshl_b32 s43, {sG}, 11
    s_add_u32 s42, s42, s43
    s_add_u32 s42, s42, {WS_Q}
    v_lshrrev_b32 v8, 5, v1
    v_lshlrev_b32 v8, 4, v8
    s_waitcnt vmcnt(0)
    s_mov_b32 exec_lo, 0x10000
    s_mov_b32 exec_hi, 0x10000
    buffer_store_dwordx4 v[12:15], v8, s[48:51], s42 offen sc1
    s_mov_b64 exec, -1
    """)
    A(f"""
    s_lshl_b32 s43, {sG}, 11
    s_lshl_b32 s42, {sH}, 10
    s_add_u32 s42, s42, s43
    s_add_u32 s42, s42, {WS_Q}
    s_mov_b32 s12, 0
    L_pollq:
    buffer_load_dwordx4 v[12:15], v96, s[48:51], s42 offen sc1
    s_waitcnt vmcnt(0)
    v_cmp_eq_u32 vcc, {sT0}, v14
    v_cmp_eq_u32 s[70:71], {sT1}, v15
    s_nop 3
    s_and_b64 vcc, vcc, s[70:71]
    s_cmp_eq_u64 vcc, -1
    s_cbranch_scc1 L_pollq_done
    {spin_guard('L_pollq', 's12')}
    L_pollq_done:
    v_lshlrev_b32 v8, 3, v1
    s_lshl_b32 s42, {sH}, 9
    v_add_u32 v8, s42, v8
    ds_write_b64 v8, v[12:13] offset:{L['Q']}
    s_waitcnt lgkmcnt(0)
    s_barrier
    s_setprio 1
    """)
    if cfg.STAMPS: A("s_memrealtime s[92:93]")

    BACC = 100
    A(f"""
    s_lshr_b32 s42, s2, 3
    s_lshl_b32 s43, {sX}, 2
    s_add_u32 s42, s42, s43
    s_and_b32 s42, s42, 31
    s_mul_i32 {sF}, {sX}, 14
    s_add_u32 {sF}, {sF}, s42
    s_cmp_lt_u32 s42, 14
    s_cselect_b32 {sFFN}, 1, 0
    """)
    for j in range(16): A(f"v_mov_b32 v{BACC+j}, 0")
    A(f"""
    s_cmp_eq_u32 {sFFN}, 0
    s_cbranch_scc1 L_ffn_done
    s_mov_b32 s44, s28
    s_mov_b32 s45, s29
    s_mov_b32 s46, {448*3584}
    s_mov_b32 s52, s30
    s_mov_b32 s53, s31
    s_mov_b32 s54, {448*3584}
    s_mov_b32 s55, 0x20000
    s_mov_b32 s42, 3584
    v_mul_lo_u32 v9, s42, v1           ; lane*3584
    s_lshl_b32 s10, {sF}, 5            ; 16 f * 2 B
    s_lshl_b32 s42, {sH}, 4
    s_add_u32 s10, s10, s42
    """)
    for i in range(7):
        A(f"s_add_u32 s11, s10, {i*64*3584}")
        A(f"buffer_load_dwordx4 v[{W+4*i}:{W+4*i+3}], v9, s[44:47], s11 offen {cfg.WFLAGS}")
        A(f"buffer_load_dwordx4 v[{W2+4*i}:{W2+4*i+3}], v9, s[52:55], s11 offen {cfg.WFLAGS}")
    A("s_waitcnt vmcnt(0)")
    gemv_slice(W, AC)
    gemv_slice(W2, AC2)
    A(f"""
    s_mov_b32 s44, s32
    s_mov_b32 s45, s33
    s_mov_b32 s46, {1792*896}
    s_mov_b32 s42, 1792
    v_mul_lo_u32 v9, s42, v2
    v_lshl_add_u32 v9, v3, 4, v9
    s_lshl_b32 s10, {sF}, 4
    s_lshl_b32 s42, {sH}, 3
    s_add_u32 s10, s10, s42
    s_mul_i32 s10, s10, 896
    """)
    for t in range(2):
        for b in range(4):
            r = W + 4*(4*t+b)
            A(f"buffer_load_dwordx4 v[{r}:{r+3}], v9, s[44:47], s10 offen offset:{t*896+b*256} {cfg.WFLAGS}")
    for j in range(4):
        A(f"v_cvt_pk_bf16_f32 v{AC+j}, v{AC+j}, v{AC+j}")
        A(f"v_cvt_pk_bf16_f32 v{AC2+j}, v{AC2+j}, v{AC2+j}")
    for j in range(4):
        A(f"v_and_b32 v{AC+j}, 0xffff0000, v{AC+j}")
        A(f"v_and_b32 v{AC2+j}, 0xffff0000, v{AC2+j}")
    for j in range(4):
        A(f"v_max_f32 v{AC+j}, 0, v{AC+j}")
    for j in range(4):
        A(f"v_mul_f32 v{AC+j}, v{AC+j}, v{AC2+j}")
    A(f"""
    v_lshrrev_b32 v8, 5, v1
    v_lshlrev_b32 v8, 4, v8
    s_lshl_b32 s42, {sH}, 5
    v_add_u32 v8, s42, v8
    s_mov_b32 exec_lo, 0x10000
    s_mov_b32 exec_hi, 0x10000
    ds_write_b128 v8, v[{AC}:{AC+3}] offset:{L['H']}
    s_mov_b64 exec, -1
    s_waitcnt lgkmcnt(0)
    v_lshlrev_b32 v8, 3, v2
    v_add_u32 v8, s42, v8
    ds_read_b64 v[{AC}:{AC+1}], v8 offset:{L['H']}
    s_waitcnt lgkmcnt(0)
    v_cvt_pk_bf16_f32 v12, v{AC}, v{AC}
    v_cvt_pk_bf16_f32 v13, v{AC+1}, v{AC+1}
    """)
    for r in range(4): A(f"v_and_b32 v{AC2+r}, v12, v{4+r}")
    for r in range(4): A(f"v_and_b32 v{AC2+4+r}, v13, v{4+r}")
    A("s_waitcnt vmcnt(0)")
    for t in range(2):
        for b in range(4):
            r = W + 4*(4*t+b)
            A(f"v_mfma_f32_16x16x32_bf16 v[{BACC+4*b}:{BACC+4*b+3}], v[{AC2+4*t}:{AC2+4*t+3}], v[{r}:{r+3}], v[{BACC+4*b}:{BACC+4*b+3}]")
    A("s_nop 7\ns_nop 3")
    A("L_ffn_done:")
    A(f"""
    v_lshlrev_b32 v8, 5, v3
    v_lshl_add_u32 v8, v2, 3, v8
    s_lshl_b32 s42, {sH}, 11
    v_add_u32 v8, s42, v8
    """)
    for b in range(4): A(f"v_mov_b32 v{BACC+4*b+1}, v{BACC+4*b+2}")
    for b in range(4): A(f"ds_write_b64 v8, v[{BACC+4*b}:{BACC+4*b+1}] offset:{L['BA']+512*b}")

    WO = 24
    sGV, sGV1 = "s72", "s73"
    A(f"""
    s_cmp_eq_u32 {sH}, 0
    s_cbranch_scc0 L_svc_b1
    s_mov_b32 s44, s24
    s_mov_b32 s45, s25
    s_mov_b32 s46, {4096*896}
    s_mov_b32 s42, {4*896}
    v_mul_lo_u32 v9, s42, v2
    v_lshl_add_u32 v9, v3, 4, v9
    s_lshl_b32 s10, {sG}, 9
    s_lshl_b32 s42, {sC}, 4
    s_add_u32 s10, s10, s42
    s_mul_i32 s10, s10, 896
    s_mov_b32 s52, s34
    s_mov_b32 s53, s35
    s_mov_b32 s54, 896
    s_mov_b32 s55, 0x20000
    """)
    GW = 88
    for i in range(7): A(f"buffer_load_ushort v{GW+i}, v97, s[52:55], 0 offen offset:{128*i}")
    for t in range(4):
        for b in range(4):
            r = WO + 4*(4*t+b)
            A(f"buffer_load_dwordx4 v[{r}:{r+3}], v9, s[44:47], s10 offen offset:{t*896+b*256} {cfg.WFLAGS}")
    A("s_waitcnt vmcnt(16)")
    for i in range(7): A(f"v_lshlrev_b32 v{GW+i}, 16, v{GW+i}")
    for i in range(7): A(f"v_mul_f32 v{GW+i}, v{GW+i}, v{X+i}")
    for i in range(7): A(f"v_cvt_pk_bf16_f32 v{GW+i}, v{GW+i}, v{GW+i}")
    for i in range(7): A(f"v_and_b32 v{GW+i}, 0xffff0000, v{GW+i}")
    A(f"""
    v_add_f32 v8, v{GW}, v{GW+1}
    v_add_f32 v9, v{GW+2}, v{GW+3}
    v_add_f32 v10, v{GW+4}, v{GW+5}
    v_add_f32 v8, v8, v{GW+6}
    v_add_f32 v9, v9, v10
    v_add_f32 v8, v8, v9
    s_nop 1
    v_add_f32_dpp v8, v8, v8 quad_perm:[1,0,3,2] row_mask:0xf bank_mask:0xf
    s_nop 1
    v_add_f32_dpp v8, v8, v8 quad_perm:[2,3,0,1] row_mask:0xf bank_mask:0xf
    s_nop 1
    v_add_f32_dpp v8, v8, v8 row_half_mirror row_mask:0xf bank_mask:0xf
    s_nop 1
    v_add_f32_dpp v8, v8, v8 row_mirror row_mask:0xf bank_mask:0xf
    v_mov_b32 v9, v8
    s_nop 1
    v_permlane16_swap_b32 v9, v8
    s_nop 1
    v_add_f32 v8, v8, v9
    v_mov_b32 v9, v8
    s_nop 1
    v_permlane32_swap_b32 v9, v8
    s_nop 1
    v_add_f32 v8, v8, v9
    ; z -> bf16
    v_cvt_pk_bf16_f32 v8, v8, v8
    v_and_b32 v8, 0xffff0000, v8
    v_mul_f32 v8, {LOG2E}, v8
    v_sub_f32 v8, 0, v8
    v_exp_f32 v8, v8
    s_nop 0
    v_add_f32 v8, 1.0, v8
    v_rcp_f32 v8, v8
    s_nop 0
    v_cvt_pk_bf16_f32 v8, v8, v8
    v_and_b32 v8, 0xffff0000, v8        ; g (bf16)
    v_sub_f32 v9, 1.0, v8
    v_cvt_pk_bf16_f32 v9, v9, v9
    v_and_b32 v9, 0xffff0000, v9        ; 1-g (bf16)
    s_nop 0
    v_readfirstlane_b32 {sGV}, v8
    v_readfirstlane_b32 {sGV1}, v9
    s_branch L_svc_join
    L_svc_b1:
    s_cmp_lt_u32 s2, 28
    s_cbranch_scc0 L_svc_join
    v_lshrrev_b32 v8, 5, v1
    v_lshlrev_b32 v8, 11, v8
    v_and_b32 v9, 31, v1
    v_lshl_add_u32 v8, v9, 6, v8
    s_mov_b32 s12, 0
    L_pollall:
    """)
    for i in range(4):
        A(f"buffer_load_dwordx2 v[{24+2*i}:{25+2*i}], v8, s[48:51], s42 offen offset:0 sc1".replace("s42", f"s{74+i}"))
    idx = len(o) - 1
    while o[idx] != "L_pollall:": idx -= 1
    setup = [f"s_mov_b32 s{74+i}, {WS_Q + 32 + 8 + i*4096}" for i in range(4)]
    o[idx:idx] = setup
    A("s_waitcnt vmcnt(0)")
    A(f"v_cmp_eq_u32 vcc, {sT0}, v24")
    for r, st in [(25, sT1), (26, sT0), (27, sT1), (28, sT0), (29, sT1), (30, sT0), (31, sT1)]:
        A(f"v_cmp_eq_u32 s[70:71], {st}, v{r}\ns_nop 3\ns_and_b64 vcc, vcc, s[70:71]")
    A(f"""
    s_cmp_eq_u64 vcc, -1
    s_cbranch_scc1 L_svc_join
    {spin_guard('L_pollall', 's12')}
    L_svc_join:
    s_waitcnt vmcnt(0) lgkmcnt(0)
    s_setprio 3
    s_barrier
    """)
    if cfg.STAMPS: A("s_memrealtime s[94:95]")

    PB = 100
    MB = 140
    assert NS <= 10
    A(f"""
    s_lshl_b32 s42, {sH}, 10
    v_add_u32 v8, s42, v96             ; h*1024 + lane*16
    s_lshl_b32 s42, {sH}, 3
    v_mov_b32 v9, s42
    """)
    for w in range(NS): A(f"ds_read_b64 v[{MB+2*w}:{MB+2*w+1}], v9 offset:{L['ML']+16*w}")
    for w in range(NS): A(f"ds_read_b128 v[{PB+4*w}:{PB+4*w+3}], v8 offset:{L['P']+2048*w}")
    A(f"s_waitcnt lgkmcnt({min(NS,15)})")
    A(f"v_mov_b32 v10, v{MB}")
    for w in range(1, NS): A(f"v_max_f32 v10, v10, v{MB+2*w}")
    for w in range(NS): A(f"v_sub_f32 v{MB+2*w}, v{MB+2*w}, v10")
    for w in range(NS): A(f"v_exp_f32 v{MB+2*w}, v{MB+2*w}")
    A("s_waitcnt lgkmcnt(0)")
    A(f"v_mul_f32 v11, v{MB}, v{MB+1}")
    for w in range(1, NS): A(f"v_fmac_f32 v11, v{MB+2*w}, v{MB+2*w+1}")
    for j in range(4): A(f"v_mul_f32 v{12+j}, v{MB}, v{PB+j}")
    for w in range(1, NS):
        for j in range(4): A(f"v_fmac_f32 v{12+j}, v{MB+2*w}, v{PB+4*w+j}")
    for j in range(6): A(f"v_min_u32 v{10+j}, -2, v{10+j}")
    A(f"""
    s_mul_i32 s11, s2, {OP_STRIDE}
    s_add_u32 s11, s11, {WS_OP}
    s_lshl_b32 s42, {sH}, 10
    s_add_u32 s43, s11, s42
    buffer_store_dwordx4 v[12:15], v96, s[48:51], s43 offen sc1
    s_lshl_b32 s42, {sH}, 3
    s_add_u32 s43, s11, s42
    v_mov_b32 v8, 0
    s_mov_b64 exec, 1
    buffer_store_dwordx2 v[10:11], v8, s[48:51], s43 offen offset:2048 sc1
    s_mov_b64 exec, -1
    s_cmp_eq_u32 {sH}, 0
    s_cbranch_scc0 L_svc_b2
    """)
    OV = 100
    ML = 108
    A(f"""
    v_lshlrev_b32 v8, 12, v2           ; k*4096
    v_lshl_add_u32 v9, v3, 2, v8       ; + i*4
    s_lshl_b32 s10, {sG}, 17           ; 32 G * 4096
    s_add_u32 s10, s10, {WS_OP}
    s_lshl_b32 s42, {sC}, 6
    s_add_u32 s11, s10, s42            ; O base
    s_lshr_b32 s42, {sC}, 4
    s_lshl_b32 s42, s42, 3
    s_add_u32 s13, s10, s42
    s_add_u32 s13, s13, 2048
    s_mov_b32 s12, 0
    L_pollo:
    """)
    for s in range(8):
        A(f"s_add_u32 s42, s11, {s*16384}")
        A(f"buffer_load_dword v{OV+s}, v9, s[48:51], s42 offen sc1")
        A(f"s_add_u32 s42, s13, {s*16384}")
        A(f"buffer_load_dwordx2 v[{ML+2*s}:{ML+2*s+1}], v8, s[48:51], s42 offen sc1")
    A("s_waitcnt vmcnt(0)")
    A(f"v_max_u32 v10, v{OV}, v{OV+1}")
    for r in list(range(OV+2, OV+8)) + list(range(ML, ML+16)): A(f"v_max_u32 v10, v10, v{r}")
    A(f"""
    v_cmp_ne_u32 vcc, -1, v10
    s_nop 3
    s_cmp_eq_u64 vcc, -1
    s_cbranch_scc1 L_pollo_done
    {spin_guard('L_pollo', 's12')}
    L_pollo_done:
    """)
    A(f"v_mov_b32 v10, v{ML}")
    for s in range(1, 8): A(f"v_max_f32 v10, v10, v{ML+2*s}")
    A(f"""
    v_mov_b32 v11, v10
    s_nop 1
    v_permlane16_swap_b32 v11, v10
    s_nop 1
    v_max_f32 v10, v10, v11
    v_mov_b32 v11, v10
    s_nop 1
    v_permlane32_swap_b32 v11, v10
    s_nop 1
    v_max_f32 v10, v10, v11
    """)
    for s in range(8): A(f"v_sub_f32 v{ML+2*s}, v{ML+2*s}, v10")
    for s in range(8): A(f"v_exp_f32 v{ML+2*s}, v{ML+2*s}")
    A("s_nop 0")
    A(f"v_mul_f32 v11, v{ML}, v{ML+1}")
    for s in range(1, 8): A(f"v_fmac_f32 v11, v{ML+2*s}, v{ML+2*s+1}")
    OD = 124
    for s in range(8):
        c = "0" if s == 0 else f"v[{OD}:{OD+3}]"
        A(f"v_mfma_f32_16x16x4_f32 v[{OD}:{OD+3}], v{OV+s}, v{ML+2*s}, {c}")
    A(f"""
    v_mov_b32 v12, v11
    s_nop 1
    v_permlane16_swap_b32 v12, v11
    s_nop 1
    v_add_f32 v11, v11, v12
    v_mov_b32 v12, v11
    s_nop 1
    v_permlane32_swap_b32 v12, v11
    s_nop 1
    v_add_f32 v11, v11, v12
    v_rcp_f32 v11, v11
    s_nop 7
    """)
    for t in range(4): A(f"v_mul_f32 v{OD+t}, v{OD+t}, v11")
    AO = 128
    for t in range(4): A(f"v_cvt_pk_bf16_f32 v{OD+t}, v{OD+t}, v{OD+t}")
    for t in range(4):
        for r in range(4): A(f"v_and_b32 v{AO+4*t+r}, v{OD+t}, v{4+r}")
    AA = 144
    A("s_nop 1")
    for t in range(4):
        for b in range(4):
            r = WO + 4*(4*t+b)
            c = "0" if t == 0 else f"v[{AA+4*b}:{AA+4*b+3}]"
            A(f"v_mfma_f32_16x16x32_bf16 v[{AA+4*b}:{AA+4*b+3}], v[{AO+4*t}:{AO+4*t+3}], v[{r}:{r+3}], {c}")
    A(f"""
    v_lshlrev_b32 v8, 5, v3
    v_lshl_add_u32 v8, v2, 3, v8
    s_nop 7
    """)
    for b in range(4): A(f"v_mov_b32 v{AA+4*b+1}, v{AA+4*b+2}")
    for b in range(4): A(f"ds_write_b64 v8, v[{AA+4*b}:{AA+4*b+1}] offset:{L['AP']+512*b}")
    A("s_waitcnt lgkmcnt(0)")
    for rnd in range(2):
        base = 100 + 12*rnd
        A(f"ds_read_b128 v[{base}:{base+3}], v96 offset:{L['AP']+1024*rnd}")
        A(f"ds_read_b128 v[{base+4}:{base+7}], v96 offset:{L['BA']+1024*rnd}")
        A(f"ds_read_b128 v[{base+8}:{base+11}], v96 offset:{L['BB']+1024*rnd}")
    A("s_waitcnt lgkmcnt(0)")
    for rnd in range(2):
        base = 100 + 12*rnd
        for j in range(4):
            A(f"v_add_f32 v{base+4+j}, v{base+4+j}, v{base+8+j}")
        for j in range(4):
            A(f"v_mul_f32 v{base+4+j}, {sGV1}, v{base+4+j}")
        for j in range(4):
            A(f"v_fma_f32 v{base+j}, v{base+j}, {sGV}, v{base+4+j}")
        for j in range(4):
            A(f"v_min_u32 v{base+j}, -2, v{base+j}")
    A(f"""
    s_mul_i32 s11, s2, {PO_STRIDE}
    s_add_u32 s11, s11, {WS_PO}
    buffer_store_dwordx4 v[100:103], v96, s[48:51], s11 offen sc1
    s_mov_b32 exec_lo, -1
    s_mov_b32 exec_hi, 0xffff
    buffer_store_dwordx4 v[112:115], v96, s[48:51], s11 offen offset:1024 sc1
    s_mov_b64 exec, -1
    """)
    if cfg.STAMPS:
        A(f"""
        s_memrealtime s[96:97]
        s_waitcnt lgkmcnt(0)
        s_mul_i32 s42, s2, 16
        s_lshl_b32 s42, s42, 5
        s_add_u32 s42, s42, {WS_STAMP}
        v_mov_b32 v20, s90
        v_mov_b32 v21, s92
        v_mov_b32 v22, s94
        v_mov_b32 v23, s96
        v_mov_b32 v13, s42
        s_mov_b64 exec, 1
        global_store_dwordx4 v13, v[20:23], s[40:41]
        s_mov_b64 exec, -1
        """)
    A("s_endpgm")

    RB = 24
    A(f"""
    L_svc_b2:
    s_cmp_lt_u32 s2, 28
    s_cbranch_scc0 L_done
    v_lshrrev_b32 v8, 2, v1
    s_mov_b32 s42, {PO_STRIDE}
    v_mul_lo_u32 v8, s42, v8
    v_and_b32 v9, 3, v1
    v_lshl_add_u32 v8, v9, 4, v8
    s_lshl_b32 s10, s2, 6
    s_add_u32 s10, s10, {WS_PO}
    s_mov_b32 s12, 0
    L_pollp:
    """)
    for i in range(16):
        A(f"s_add_u32 s42, s10, {i*16*PO_STRIDE}")
        A(f"buffer_load_dwordx4 v[{RB+4*i}:{RB+4*i+3}], v8, s[48:51], s42 offen sc1")
    A("s_waitcnt vmcnt(0)")
    A(f"v_max_u32 v10, v{RB}, v{RB+1}")
    for r in range(RB+2, RB+64): A(f"v_max_u32 v10, v10, v{r}")
    A(f"""
    v_cmp_ne_u32 vcc, -1, v10
    s_nop 3
    s_cmp_eq_u64 vcc, -1
    s_cbranch_scc1 L_pollp_done
    {spin_guard('L_pollp', 's12')}
    L_pollp_done:
    """)
    n = 16
    while n > 1:
        h = n // 2
        for i in range(h):
            for j in range(4): A(f"v_add_f32 v{RB+4*i+j}, v{RB+4*i+j}, v{RB+4*(i+h)+j}")
        n = h
    for mode in ["row_ror:4", "row_ror:8"]:
        A("s_nop 1")
        for j in range(4): A(f"v_add_f32_dpp v{RB+j}, v{RB+j}, v{RB+j} {mode} row_mask:0xf bank_mask:0xf")
    for sw in ["v_permlane16_swap_b32", "v_permlane32_swap_b32"]:
        for j in range(4): A(f"v_mov_b32 v{RB+4+j}, v{RB+j}")
        A("s_nop 1")
        for j in range(4): A(f"{sw} v{RB+4+j}, v{RB+j}")
        A("s_nop 1")
        for j in range(4): A(f"v_add_f32 v{RB+j}, v{RB+j}, v{RB+4+j}")
    A(f"""
    v_cvt_pk_bf16_f32 v10, v{RB}, v{RB+1}
    v_cvt_pk_bf16_f32 v11, v{RB+2}, v{RB+3}
    s_mov_b32 s44, s36
    s_mov_b32 s45, s37
    s_mov_b32 s46, 896
    s_lshl_b32 s42, s2, 5
    v_lshlrev_b32 v8, 3, v1
    s_mov_b64 exec, 15
    buffer_store_dwordx2 v[10:11], v8, s[44:47], s42 offen
    s_mov_b64 exec, -1
    s_cmp_eq_u32 s2, 0
    s_cbranch_scc0 L_fin
    s_sub_u32 s42, {sT0}, {TAG_C_LO}
    s_subb_u32 s43, {sT1}, {TAG_C_HI}
    s_add_u32 s42, s42, 1
    s_addc_u32 s43, s43, 0
    v_mov_b32 v10, s42
    v_mov_b32 v11, s43
    v_mov_b32 v8, 0
    s_mov_b64 exec, 1
    buffer_store_dwordx2 v[10:11], v8, s[48:51], 0 offen offset:{WS_E} sc1
    s_mov_b64 exec, -1
    L_fin:
    """)
    if cfg.STAMPS:
        A(f"""
        s_memrealtime s[96:97]
        s_waitcnt lgkmcnt(0)
        s_mul_i32 s42, s2, 16
        s_add_u32 s42, s42, 1
        s_lshl_b32 s42, s42, 5
        s_add_u32 s42, s42, {WS_STAMP}
        v_mov_b32 v20, s90
        v_mov_b32 v21, s92
        v_mov_b32 v22, s94
        v_mov_b32 v23, s96
        v_mov_b32 v13, s42
        s_mov_b64 exec, 1
        global_store_dwordx4 v13, v[20:23], s[40:41]
        s_mov_b64 exec, -1
        """)
    A("L_done:\ns_endpgm")
    A(f"""
    .section .rodata,"a"
    .p2align 6
    .amdhsa_kernel {KNAME}
      .amdhsa_next_free_vgpr 168
      .amdhsa_next_free_sgpr 102
      .amdhsa_accum_offset 168
      .amdhsa_group_segment_fixed_size 0
      .amdhsa_kernarg_size 104
      .amdhsa_user_sgpr_count 2
      .amdhsa_user_sgpr_kernarg_segment_ptr 1
      .amdhsa_system_sgpr_workgroup_id_x 1
    .end_amdhsa_kernel
    """)
    return "\n".join(o) + "\n"

if __name__ == "__main__":
    cfg = Cfg()
    out = sys.argv[1]
    for kv in sys.argv[2:]:
        k, v = kv.split("=")
        cur = getattr(cfg, k)
        if isinstance(cur, bool): v = v in ("1", "True", "true")
        elif isinstance(cur, int): v = int(v)
        setattr(cfg, k, v)
    open(out, "w").write(gen(cfg))
```
